```python
import torch

def _softmax(x, axis=-1):
    return torch.softmax(x, dim=axis)
def _gelu(x):
    return torch.nn.functional.gelu(x, approximate="tanh")
def _silu(x):
    return torch.nn.functional.silu(x)
def _sigmoid(x):
    return torch.sigmoid(x)
def _layernorm(x, axis=-1, eps=1e-5):
    m = x.mean(dim=axis, keepdim=True)
    v = x.var(dim=axis, keepdim=True, unbiased=False)
    return (x - m) / torch.sqrt(v + eps)
def _scatter_add(tgt, idx, src, axis=0):
    return tgt.clone().index_add_(axis, idx, src)
def _segment_sum(src, seg, n):
    out = torch.zeros((n,) + src.shape[1:], dtype=src.dtype)
    return out.index_add_(0, seg, src)
def _pad(x, pw):
    flat = tuple(v for pair in reversed(pw) for v in pair)
    return torch.nn.functional.pad(x, flat)

kernel_name = 'gated_mix__mha_block__dense_activation_squared_relu__prompt'

def setup_inputs():

    _w = (lambda a: (lambda t: t.to(torch.bfloat16) if t.is_floating_point() else t)(torch.as_tensor(a)))
    def _A_setup():
        B, S, D, H = 1, 2048, 512, 32
        return {
            "x": _w((lambda *s: torch.randn(*s, dtype=torch.bfloat16) * 0.05)(B, S, D)),
            "wqkv": _w((lambda *s: torch.randn(*s, dtype=torch.bfloat16) * 0.8)(D, 3 * D)),
            "wo": _w((lambda *s: torch.randn(*s, dtype=torch.bfloat16) * 0.1)(D, D)),
        }
    _A_in = _A_setup()

    def _B_setup():
        B, S, D, F = 1, 2048, 512, 1792
        return {
            "x": _w((lambda *s: torch.randn(*s, dtype=torch.bfloat16) * 0.05)(B, S, D)),
            "w1": _w((lambda *s: torch.randn(*s, dtype=torch.bfloat16) * 0.1)(D, F)),
            "b1": _w((lambda *s: torch.randn(*s, dtype=torch.bfloat16) * 0.05)(F)),
            "w2": _w((lambda *s: torch.randn(*s, dtype=torch.bfloat16) * 0.05)(F, D)),
            "b2": _w((lambda *s: torch.randn(*s, dtype=torch.bfloat16) * 0.05)(D)),
        }
    _B_in = _B_setup()

    return {
        "A_x": _A_in["x"],
        "A_wqkv": _A_in["wqkv"],
        "A_wo": _A_in["wo"],
        "B_x": _B_in["x"],
        "B_w1": _B_in["w1"],
        "B_b1": _B_in["b1"],
        "B_w2": _B_in["w2"],
        "B_b2": _B_in["b2"],
        "gate_w": _w((lambda *s: torch.randn(*s, dtype=torch.bfloat16) * 0.05)(512) * 16.0),
    }

def reference(A_x, A_wqkv, A_wo, B_x, B_w1, B_b1, B_w2, B_b2, gate_w):
    def _A_ref(x, wqkv, wo):
        B, S, D = x.shape
        H = 32
        Dh = D // H
        qkv = (lambda x, *d: x.permute(*d))((x @ wqkv).reshape(B, S, 3, H, Dh), 2, 0, 3, 1, 4)
        q, k, v = qkv[0], qkv[1], qkv[2]
        scores = torch.einsum("bhqd,bhkd->bhqk", q, k) * (Dh ** -0.5)
        p = _softmax(scores, axis=-1)
        o = torch.einsum("bhqk,bhkd->bhqd", p, v)
        return (lambda x, *d: x.permute(*d))(o, 0, 2, 1, 3).reshape(B, S, D) @ wo

    def _B_ref(x, w1, b1, w2, b2):
        h = torch.einsum("bsd,df->bsf", x, w1) + b1
        zero = torch.zeros_like(h)
        r = torch.where(h > zero, h, zero)
        h = r * r
        out = torch.einsum("bsf,fd->bsd", h, w2) + b2
        return out

    x = A_x
    g = _sigmoid((x * gate_w).sum(-1, keepdims=True))
    a = _A_ref(x, A_wqkv, A_wo)
    b = _B_ref(x, B_w1, B_b1, B_w2, B_b2)
    return g * a + (1 - g) * b
```

```python
class Asm:
    def __init__(self):
        self.lines = []
        self._lbl = 0
    def __call__(self, s, *a):
        if a:
            s = s.format(*a)
        for ln in s.split("\n"):
            ln = ln.strip()
            if not ln:
                continue
            if ln.endswith(":") and " " not in ln:
                self.lines.append(ln)
            else:
                self.lines.append("    " + ln)
    def label(self, base="L"):
        self._lbl += 1
        return f"{base}_{self._lbl}"
    def raw(self, s):
        self.lines.append(s)
    def text(self):
        return "\n".join(self.lines) + "\n"

def v(i, n=1):
    return f"v{i}" if n == 1 else f"v[{i}:{i+n-1}]"
def s(i, n=1):
    return f"s{i}" if n == 1 else f"s[{i}:{i+n-1}]"

class RegAlloc:
    def __init__(self, start=0, limit=256):
        self.next = start
        self.limit = limit
        self.hi = start
    def alloc(self, n=1, align=1):
        r = (self.next + align - 1) // align * align
        self.next = r + n
        assert self.next <= self.limit, f"out of regs: {self.next} > {self.limit}"
        self.hi = max(self.hi, self.next)
        return r

def srd(a, d, base, nbytes):
    a(f"s_mov_b32 s{d}, s{base}")
    a(f"s_and_b32 s{d+1}, s{base+1}, 0xffff")
    a(f"s_mov_b32 s{d+2}, {hex(nbytes)}")
    a(f"s_mov_b32 s{d+3}, 0x00020000")

def kernel_header(a, name):
    a.raw(f".globl {name}")
    a.raw(".p2align 8")
    a.raw(f".type {name},@function")
    a.raw(f"{name}:")

def kernel_desc(a, name, nvgpr, nsgpr=102, accum=None):
    if accum is None:
        accum = min(256, (nvgpr + 3) // 4 * 4)
    a.raw(f".amdhsa_kernel {name}")
    a.raw(f"  .amdhsa_next_free_vgpr {nvgpr}")
    a.raw(f"  .amdhsa_next_free_sgpr {nsgpr}")
    a.raw(f"  .amdhsa_accum_offset {accum}")
    a.raw("  .amdhsa_group_segment_fixed_size 0")
    a.raw("  .amdhsa_kernarg_size 96")
    a.raw("  .amdhsa_user_sgpr_count 2")
    a.raw("  .amdhsa_user_sgpr_kernarg_segment_ptr 1")
    a.raw("  .amdhsa_system_sgpr_workgroup_id_x 1")
    a.raw(".end_amdhsa_kernel")
```

```python
import sys, math
from asmlib import *

NAME = "gated_mix__mha_block__dense_activation_squared_relu__prompt"
XF   = 0x0000000
W1F  = 0x0200000
WCF  = 0x0400000
HOF  = 0x0800000
QF   = 0x1200000
KVF  = 0x1400000
GOFF = 0x1800000
WS_BYTES = 0x10000000
LOG2E = 1.4426950408889634
import struct
def f32(x): return "0x%08x" % struct.unpack("<I", struct.pack("<f", x))[0]

P_X, P_WQKV, P_WO, P_BX, P_W1, P_B1, P_W2, P_B2 = 16, 18, 20, 22, 24, 26, 28, 30
P_GATE, P_OUT, P_DBG, P_WS = 32, 34, 36, 38

def prologue(a, nwg, lend):
    a(f"s_cmp_ge_u32 s2, {nwg}")
    a(f"s_cbranch_scc1 {lend}")
    a("s_load_dwordx16 s[16:31], s[0:1], 0")
    a("s_load_dwordx8 s[32:39], s[0:1], 64")
    a("v_lshrrev_b32 v1, 6, v0")
    a("v_and_b32 v0, 63, v0")
    a("v_readfirstlane_b32 s3, v1")
    a("s_waitcnt lgkmcnt(0)")

MFMA = "v_mfma_f32_32x32x16_bf16"
def mfma(d, A, B, c):
    cs = "0" if c is None else v(c, 16)
    return f"{MFMA} {v(d,16)}, {v(A,4)}, {v(B,4)}, {cs}"

def k_conv(a):
    name = "conv_kernel"
    kernel_header(a, name)
    prologue(a, 192, "conv_end")
    SW, SS = 40, 44
    srd(a, SW, P_WS, WS_BYTES)
    a("s_lshl_b32 s4, s2, 2")
    a("s_add_u32 s4, s4, s3")
    a("s_lshl_b32 s5, s3, 13")
    a("v_lshlrev_b32 v2, 4, v0")
    a("s_cmp_ge_u32 s4, 256")
    a("s_cbranch_scc1 conv_w")
    srd(a, SS, P_X, 2048 * 512 * 2)
    a("s_lshr_b32 s6, s4, 3")
    a("s_and_b32 s7, s4, 7")
    a("s_lshl_b32 s8, s6, 16")
    a("s_lshl_b32 s9, s7, 7")
    a("s_add_u32 s8, s8, s9")
    a("v_lshrrev_b32 v3, 3, v0")
    a("v_lshlrev_b32 v3, 10, v3")
    a("v_lshrrev_b32 v4, 4, v0")
    a("v_xor_b32 v4, v4, v0")
    a("v_and_b32 v4, 7, v4")
    a("v_lshl_add_u32 v3, v4, 4, v3")
    a("v_xor_b32 v4, 64, v3")
    for i in range(8):
        a(f"s_add_u32 s10, s5, {i*1024}")
        a("s_mov_b32 m0, s10")
        a(f"s_add_u32 s11, s8, {i*8192}")
        a(f"buffer_load_dwordx4 v{3 + (i & 1)}, s[{SS}:{SS+3}], s11 offen lds")
    a("v_and_b32 v5, 31, v0")
    a("v_lshrrev_b32 v6, 1, v5")
    a("v_and_b32 v6, 7, v6")
    a("v_lshrrev_b32 v7, 5, v0")
    a("v_xor_b32 v6, v6, v7")
    a("v_lshlrev_b32 v6, 4, v6")
    a("v_lshl_add_u32 v5, v5, 7, v6")
    a("v_add_u32 v5, s5, v5")
    for sidx in range(1, 4):
        a(f"v_xor_b32 v{5+sidx}, {sidx*32}, v5")
    a("s_lshl_b32 s8, s6, 16")
    a("s_lshl_b32 s9, s7, 12")
    a("s_add_u32 s8, s8, s9")
    a(f"s_add_u32 s8, s8, {XF}")
    a(f"s_add_u32 s9, s8, 32768")
    a("s_waitcnt vmcnt(0)")
    for T in range(2):
        for sidx in range(4):
            a(f"ds_read_b128 {v(16 + 16*T + 4*sidx, 4)}, v{5+sidx} offset:{T*4096}")
    a("s_waitcnt lgkmcnt(0)")
    for T in range(2):
        for sidx in range(4):
            a(f"buffer_store_dwordx4 {v(16 + 16*T + 4*sidx, 4)}, v2, s[{SW}:{SW+3}], s{8+T} offen offset:{sidx*1024}")
    a("s_branch conv_end")
    a("conv_w:")
    a("s_cmp_ge_u32 s4, 480")
    a("s_cbranch_scc1 conv_w2")
    srd(a, SS, P_W1, 512 * 1792 * 2)
    a("s_sub_u32 s4, s4, 256")
    a("s_mul_i32 s6, s4, 2341")
    a("s_lshr_b32 s6, s6, 16")
    a("s_mul_i32 s7, s6, 28")
    a("s_sub_u32 s7, s4, s7")
    a("s_movk_i32 s12, 3584")
    a("s_movk_i32 s13, 1024")
    a("s_movk_i32 s14, 512")
    a("s_lshl_b32 s8, s7, 16")
    a("s_lshl_b32 s9, s6, 12")
    a("s_add_u32 s8, s8, s9")
    a(f"s_add_u32 s8, s8, {W1F}")
    a(f"s_add_u32 s9, s8, 32768")
    a("s_branch conv_wgo")
    a("conv_w2:")
    a("s_movk_i32 s12, 1024")
    a("s_movk_i32 s13, 512")
    a("s_movk_i32 s14, 1024")
    a("s_cmp_ge_u32 s4, 704")
    a("s_cbranch_scc1 conv_wo")
    srd(a, SS, P_W2, 1792 * 512 * 2)
    a("s_sub_u32 s4, s4, 480")
    a("s_mov_b32 s15, 0")
    a("s_branch conv_w2c")
    a("conv_wo:")
    srd(a, SS, P_WO, 512 * 512 * 2)
    a("s_sub_u32 s4, s4, 704")
    a(f"s_mov_b32 s15, {112*1024}")
    a("conv_w2c:")
    a("s_lshr_b32 s6, s4, 3")
    a("s_and_b32 s7, s4, 7")
    a(f"s_mul_i32 s8, s7, {2*144*1024}")
    a("s_lshl_b32 s9, s6, 12")
    a("s_add_u32 s8, s8, s9")
    a("s_add_u32 s8, s8, s15")
    a(f"s_add_u32 s8, s8, {WCF}")
    a(f"s_add_u32 s9, s8, {144*1024}")
    a("conv_wgo:")
    a("s_mul_i32 s10, s6, s12")
    a("s_lshl_b32 s10, s10, 6")
    a("s_lshl_b32 s11, s7, 7")
    a("s_add_u32 s48, s10, s11")
    a("s_lshl_b32 s49, s12, 3")
    a("v_lshrrev_b32 v3, 3, v0")
    a("v_mul_lo_u32 v3, v3, s12")
    a("v_bfe_u32 v4, v0, 4, 1")
    a("v_lshlrev_b32 v4, 2, v4")
    a("v_xor_b32 v4, v4, v0")
    a("v_and_b32 v4, 7, v4")
    a("v_lshl_add_u32 v3, v4, 4, v3")
    for i in range(8):
        a(f"s_add_u32 s10, s5, {i*1024}")
        a("s_mov_b32 m0, s10")
        a("s_nop 0")
        a(f"buffer_load_dwordx4 v3, s[{SS}:{SS+3}], s48 offen lds")
        a("s_add_u32 s48, s48, s49")
    a("v_lshrrev_b32 v5, 5, v0")
    a("v_mul_lo_u32 v5, v5, s13")
    a("v_bfe_u32 v6, v0, 2, 2")
    a("v_lshl_add_u32 v5, v6, 7, v5")
    a("v_bfe_u32 v6, v0, 3, 1")
    a("v_lshl_add_u32 v5, v6, 6, v5")
    a("v_bfe_u32 v6, v0, 4, 1")
    a("v_lshl_add_u32 v5, v6, 5, v5")
    a("v_and_b32 v6, 3, v0")
    a("v_lshl_add_u32 v5, v6, 3, v5")
    a("v_add_u32 v5, s5, v5")
    a("v_add_u32 v6, s14, v5")
    a("v_xor_b32 v7, 64, v5")
    a("v_xor_b32 v8, 64, v6")
    a("s_waitcnt vmcnt(0)")
    for nt in range(2):
        for sidx in range(4):
            for r in range(2):
                a(f"ds_read_b64_tr_b16 {v(16 + 16*nt + 4*sidx + 2*r, 2)}, v{5 + 2*nt + r} offset:{sidx*2048}")
        a("s_waitcnt lgkmcnt(0)")
    for nt in range(2):
        for sidx in range(4):
            a(f"buffer_store_dwordx4 {v(16 + 16*nt + 4*sidx, 4)}, v2, s[{SW}:{SW+3}], s{8+nt} offen offset:{sidx*1024}")
    a("conv_end:")
    a("s_endpgm")
    return name, 48, (192, 256, 32768)

def k_qkv(a):
    name = "qkv_kernel"
    kernel_header(a, name)
    prologue(a, 256, "qkv_end")
    SW, SX, SQ, SG = 40, 44, 48, 52
    srd(a, SW, P_WS, WS_BYTES)
    srd(a, SX, P_X, 2048 * 512 * 2)
    srd(a, SQ, P_WQKV, 512 * 1536 * 2)
    srd(a, SG, P_GATE, 1024)
    NSLOT = 6
    XST = 65536
    a("s_and_b32 s4, s2, 7")
    a("s_lshr_b32 s5, s2, 3")
    a("v_lshrrev_b32 v2, 5, v0")
    a("v_bfe_u32 v3, v0, 1, 2")
    a("v_lshl_add_u32 v2, v2, 2, v3")
    a("v_mul_u32_u24 v2, 3072, v2")
    a("v_bfe_u32 v3, v0, 3, 2")
    a("v_lshl_add_u32 v2, v3, 10, v2")
    a("v_and_b32 v4, 1, v0")
    a("v_lshl_add_u32 v2, v4, 4, v2")
    a("v_mov_b32 v4, 0x7fff0000")
    a("v_cmp_eq_u32 vcc, 3, v3")
    a("s_nop 1")
    a("v_cndmask_b32 v2, v2, v4, vcc")
    a(f"s_mul_i32 s6, s3, {128*3072}")
    a("s_lshl_b32 s7, s5, 5")
    a("s_add_u32 s6, s6, s7")
    a("s_lshl_b32 s7, s3, 14")
    for i in range(16):
        a("s_mov_b32 m0, s7")
        a("s_add_u32 s7, s7, 1024")
        a(f"buffer_load_dwordx4 v2, s[{SQ}:{SQ+3}], s6 offen lds")
        a(f"s_add_u32 s6, s6, {8*3072}")
    a("v_lshlrev_b32 v3, 2, v0")
    a("s_lshl_b32 s6, s3, 8")
    a(f"buffer_load_dword v4, v3, s[{SG}:{SG+3}], s6 offen")
    a("v_lshrrev_b32 v5, 2, v0")
    a("v_lshlrev_b32 v5, 10, v5")
    a("v_lshrrev_b32 v6, 4, v0")
    a("v_xor_b32 v6, v6, v0")
    a("v_and_b32 v6, 3, v6")
    a("v_lshl_add_u32 v5, v6, 4, v5")
    a("s_lshl_b32 s8, s4, 18")
    a("s_lshl_b32 s9, s3, 16")
    a("s_add_u32 s8, s8, s9")
    a(f"s_mul_i32 s9, s3, {NSLOT*4096}")
    a(f"s_add_u32 s9, s9, {XST}")
    def xdma(st):
        slot = st % NSLOT
        for i in range(4):
            a(f"s_add_u32 s10, s9, {slot*4096 + i*1024}")
            a("s_mov_b32 m0, s10")
            a(f"s_add_u32 s11, s8, {i*16384 + st*64}")
            a(f"buffer_load_dwordx4 v5, s[{SX}:{SX+3}], s11 offen lds")
    for st in range(NSLOT):
        xdma(st)
    a("v_lshrrev_b32 v6, 1, v0")
    a("v_lshlrev_b32 v6, 9, v6")
    a("v_and_b32 v7, 1, v0")
    a("v_lshl_add_u32 v6, v7, 6, v6")
    a("s_lshl_b32 s6, s3, 14")
    a("v_add_u32 v6, s6, v6")
    a("v_and_b32 v7, 31, v0")
    a("v_bfe_u32 v8, v0, 2, 2")
    a("v_lshrrev_b32 v9, 5, v0")
    a("v_xor_b32 v8, v8, v9")
    a("v_lshlrev_b32 v8, 4, v8")
    a("v_lshl_add_u32 v7, v7, 6, v8")
    a("v_add_u32 v7, s9, v7")
    a("v_xor_b32 v8, 32, v7")
    a("v_lshlrev_b32 v9, 10, v9")
    a("v_and_b32 v10, 31, v0")
    a("v_lshl_add_u32 v9, v10, 3, v9")
    a(f"s_waitcnt vmcnt({4*NSLOT})")
    a("ds_write_b16 v6, v4 offset:384")
    a("ds_write_b16_d16_hi v6, v4 offset:416")
    a("s_waitcnt lgkmcnt(0)")
    a("s_barrier")
    ACC = 16
    FB = 80
    def reads(ks):
        st, sidx = ks >> 1, ks & 1
        slot = st % NSLOT
        fb = FB + 16 * (ks & 1)
        a(f"ds_read_b128 {v(fb,4)}, v{7+sidx} offset:{slot*4096}")
        a(f"ds_read_b128 {v(fb+4,4)}, v{7+sidx} offset:{slot*4096+2048}")
        for r in range(2):
            a(f"ds_read_b64_tr_b16 {v(fb+8+2*r,2)}, v9 offset:{ks*2048 + r*512}")
        for r in range(2):
            a(f"ds_read_b64_tr_b16 {v(fb+12+2*r,2)}, v9 offset:{ks*2048 + r*512 + 256}")
    issued = NSLOT
    a(f"s_waitcnt vmcnt({4*(issued-1)})")
    reads(0)
    for ks in range(32):
        if ks + 1 < 32:
            if (ks + 1) % 2 == 0:
                st1 = (ks + 1) >> 1
                a(f"s_waitcnt vmcnt({4*(issued-1-st1)})")
            reads(ks + 1)
            a("s_waitcnt lgkmcnt(6)")
        else:
            a("s_waitcnt lgkmcnt(0)")
        fb = FB + 16 * (ks & 1)
        for T in range(2):
            a(mfma(ACC + 16*T, fb + 8, fb + 4*T, None if ks == 0 else ACC + 16*T))
        for T in range(2):
            a(mfma(ACC + 32 + 16*T, fb + 4*T, fb + 12, None if ks == 0 else ACC + 32 + 16*T))
        if ks % 2 == 1 and issued < 16:
            xdma(issued)
            issued += 1
    a("s_nop 15")
    a("v_lshlrev_b32 v2, 4, v0")
    a(f"s_mov_b32 s10, {f32(0.25*LOG2E)}")
    a("s_lshl_b32 s11, s4, 3")
    a("s_lshl_b32 s12, s3, 1")
    a("s_add_u32 s11, s11, s12")
    a("s_lshl_b32 s12, s5, 6")
    a("s_add_u32 s12, s12, s11")
    a("s_lshl_b32 s12, s12, 10")
    a(f"s_add_u32 s12, s12, {QF}")
    a("s_lshl_b32 s13, s5, 17")
    a("s_lshr_b32 s14, s11, 2")
    a("s_lshl_b32 s14, s14, 13")
    a("s_add_u32 s13, s13, s14")
    a("s_and_b32 s14, s11, 3")
    a("s_lshl_b32 s14, s14, 10")
    a("s_add_u32 s13, s13, s14")
    a(f"s_add_u32 s13, s13, {KVF}")
    O = FB
    for T in range(2):
        base = ACC + 16*T
        for i in range(8):
            a(f"v_mul_f32 v{base+i}, s10, v{base+i}")
        for i in range(4):
            a(f"v_cvt_pk_bf16_f32 v{O+8*T+i}, v{base+2*i}, v{base+2*i+1}")
        for i in range(4):
            a(f"v_cvt_pk_bf16_f32 v{O+8*T+4+i}, v{base+8+2*i}, v{base+8+2*i+1}")
        a(f"buffer_store_dwordx4 {v(O+8*T,4)}, v2, s[{SW}:{SW+3}], s12 offen offset:{T*1024}")
        a(f"buffer_store_dwordx4 {v(O+8*T+4,4)}, v2, s[{SW}:{SW+3}], s13 offen offset:{T*1024}")
    a("v_lshrrev_b32 v3, 5, v0")
    a("v_and_b32 v4, 15, v0")
    a("v_lshl_add_u32 v3, v3, 4, v4")
    a("v_lshlrev_b32 v3, 4, v3")
    a("s_add_u32 s13, s13, 4096")
    for T in range(2):
        base = ACC + 32 + 16*T
        for i in range(8):
            a(f"v_cvt_pk_bf16_f32 v{O+16+8*T+i}, v{base+2*i}, v{base+2*i+1}")
    a("s_mov_b32 s14, 0x0000ffff")
    a("s_mov_b32 s15, 0x0000ffff")
    a("s_mov_b64 exec, s[14:15]")
    for T in range(2):
        for m in range(2):
            a(f"buffer_store_dwordx4 {v(O+16+8*T+4*m,4)}, v3, s[{SW}:{SW+3}], s13 offen offset:{T*1024+m*512}")
    a("s_cmp_lg_u32 s5, 0")
    a("s_cbranch_scc1 qkv_end")
    a("s_mov_b32 s14, 0x00010000")
    a("s_mov_b32 s15, 0x00010000")
    a("s_mov_b64 exec, s[14:15]")
    a(f"s_mov_b32 s10, {f32(-LOG2E)}")
    a("v_lshrrev_b32 v3, 5, v0")
    a("v_lshlrev_b32 v3, 4, v3")
    a("s_lshl_b32 s11, s11, 7")
    a(f"s_add_u32 s11, s11, {GOFF}")
    for T in range(2):
        base = ACC + 32 + 16*T
        for i in range(16):
            a(f"v_mul_f32 v{base+i}, s10, v{base+i}")
        for i in range(16):
            a(f"v_exp_f32 v{base+i}, v{base+i}")
        a("s_nop 0")
        for i in range(16):
            a(f"v_add_f32 v{base+i}, 1.0, v{base+i}")
        for i in range(16):
            a(f"v_rcp_f32 v{base+i}, v{base+i}")
        a("s_nop 0")
        for q in range(4):
            a(f"buffer_store_dwordx4 {v(base+4*q,4)}, v3, s[{SW}:{SW+3}], s11 offen offset:{T*128+q*32}")
    a("qkv_end:")
    a("s_endpgm")
    return name, 112, (256, 256, 163840)

def softmax_phase(a, S, P, qk, pv0, pv1):
    e = lambda i: f"v_exp_f32 v{S+i}, v{S+i}"
    c = lambda i: f"v_cvt_pk_bf16_f32 v{P+i}, v{S+2*i}, v{S+2*i+1}"
    seq = [qk, e(0), e(1), e(2), e(3), c(0), e(4), e(5), c(1), pv0, e(6), e(7), c(2), e(8), e(9), c(3),
           e(10), e(11), c(4), pv1, e(12), e(13), c(5), e(14), e(15), c(6), c(7)]
    for x in seq:
        if x: a(x)

def k_attn(a):
    name = "attn_kernel"
    kernel_header(a, name)
    prologue(a, 256, "attn_end")
    SW = 40
    srd(a, SW, P_WS, WS_BYTES)
    ONES = 131072
    CMB = ONES + 4096
    a("s_and_b32 s5, s2, 31")
    a("s_lshr_b32 s4, s2, 5")
    a("s_and_b32 s6, s3, 3")
    a("s_lshr_b32 s7, s3, 2")
    R = RegAlloc(16, 168)
    Sa, Sb, Oa, Ob, Ca, Cb = [R.alloc(16, 4) for _ in range(6)]
    Pa, Pb = R.alloc(8, 4), R.alloc(8, 4)
    Qa, Qb = R.alloc(4, 4), R.alloc(4, 4)
    Kb = [R.alloc(4, 4), R.alloc(4, 4)]
    Vb = [R.alloc(8, 4), R.alloc(8, 4)]
    kaddr, vaddr, vinc, kaddr0, vaddr0, vg, tmp, tmp2 = 3, 4, 5, 6, 7, 8, 10, 11
    a("v_lshlrev_b32 v2, 4, v0")
    a("s_lshl_b32 s8, s5, 6")
    a("s_lshl_b32 s9, s4, 3")
    a("s_lshl_b32 s10, s6, 1")
    a("s_add_u32 s9, s9, s10")
    a("s_add_u32 s8, s8, s9")
    a("s_lshl_b32 s8, s8, 10")
    a(f"s_add_u32 s8, s8, {QF}")
    a(f"buffer_load_dwordx4 {v(Qa,4)}, v2, s[{SW}:{SW+3}], s8 offen")
    a(f"buffer_load_dwordx4 {v(Qb,4)}, v2, s[{SW}:{SW+3}], s8 offen offset:1024")
    a(f"v_and_b32 v{tmp}, 31, v0")
    a(f"v_lshlrev_b32 v{tmp}, 2, v{tmp}")
    a("s_lshl_b32 s10, s9, 7")
    a(f"s_add_u32 s10, s10, {GOFF}")
    a(f"buffer_load_dword v{vg}, v{tmp}, s[{SW}:{SW+3}], s10 offen")
    a(f"buffer_load_dword v{vg+1}, v{tmp}, s[{SW}:{SW+3}], s10 offen offset:128")
    a("s_lshl_b32 s10, s5, 17")
    a("s_lshl_b32 s11, s3, 10")
    a("s_add_u32 s10, s10, s11")
    a(f"s_add_u32 s10, s10, {KVF}")
    for n in range(16):
        g = (n >> 1) + 8 * (n & 1)
        a(f"s_add_u32 s12, s11, {g*8192}")
        a("s_mov_b32 m0, s12")
        a(f"s_add_u32 s13, s10, {g*8192}")
        a(f"buffer_load_dwordx4 v2, s[{SW}:{SW+3}], s13 offen lds")
    for i in range(4):
        a(f"v_mov_b32 v{Sa+i}, 0x3f803f80")
    a(f"s_and_b32 s12, s3, 3")
    a("s_lshl_b32 s12, s12, 10")
    a(f"s_add_u32 s12, s12, {ONES}")
    a(f"v_add_u32 v{tmp}, s12, v2")
    a(f"ds_write_b128 v{tmp}, {v(Sa,4)}")
    a("s_lshl_b32 s12, s7, 16")
    a(f"v_add_u32 v{kaddr0}, s12, v2")
    a(f"v_lshrrev_b32 v{tmp}, 5, v0")
    a(f"v_and_b32 v{tmp2}, 15, v0")
    a(f"v_lshl_add_u32 v{tmp}, v{tmp}, 4, v{tmp2}")
    a(f"v_lshlrev_b32 v{tmp}, 4, v{tmp}")
    a(f"s_add_u32 s12, s12, 4096")
    a(f"v_add_u32 v{tmp}, s12, v{tmp}")
    a(f"v_lshlrev_b32 v{tmp2}, 4, v{tmp2}")
    a(f"v_add_u32 v{tmp2}, {ONES}, v{tmp2}")
    a(f"v_and_b32 v{vinc}, 16, v0")
    a(f"v_cmp_eq_u32 vcc, 0, v{vinc}")
    a(f"v_mov_b32 v{vinc}, 0x2000")
    a("s_nop 0")
    a(f"v_cndmask_b32 v{vaddr0}, v{tmp2}, v{tmp}, vcc")
    a(f"v_cndmask_b32 v{vinc}, 0, v{vinc}, vcc")
    a("s_waitcnt vmcnt(10) lgkmcnt(0)")
    a("s_barrier")
    a(f"ds_read_b128 {v(Kb[0],4)}, v{kaddr0}")
    a("s_waitcnt lgkmcnt(0)")
    a(mfma(Sa, Kb[0], Qa, None))
    a(mfma(Sb, Kb[0], Qb, None))
    a("s_nop 15")
    def rowmax(S, dst):
        a(f"v_max3_f32 v{dst}, v{S}, v{S+1}, v{S+2}")
        for i in range(3, 15, 2):
            a(f"v_max3_f32 v{dst}, v{dst}, v{S+i}, v{S+i+1}")
        a(f"v_max_f32 v{dst}, v{dst}, v{S+15}")
    def setC(mreg, C):
        a(f"v_mov_b32 v{tmp2}, v{mreg}")
        a("s_nop 1")
        a(f"v_permlane32_swap_b32 v{mreg}, v{tmp2}")
        a("s_nop 1")
        a(f"v_max_f32 v{mreg}, v{mreg}, v{tmp2}")
        for i in range(16):
            a(f"v_sub_f32 v{C+i}, 0, v{mreg}")
    rowmax(Sa, tmp); setC(tmp, Ca)
    rowmax(Sb, tmp); setC(tmp, Cb)
    a("s_mov_b32 s20, 0")
    a("attn_main:")
    for r in list(range(Oa, Oa+16)) + list(range(Ob, Ob+16)) + list(range(Pb, Pb+8)) + list(range(Vb[1], Vb[1]+8)):
        a(f"v_mov_b32 v{r}, 0")
    a(f"v_mov_b32 v{kaddr}, v{kaddr0}")
    a(f"v_mov_b32 v{vaddr}, v{vaddr0}")
    a(f"ds_read_b128 {v(Kb[0],4)}, v{kaddr}")
    a("s_waitcnt lgkmcnt(0)")
    a(mfma(Sa, Kb[0], Qa, Ca))
    a("s_mov_b32 s21, 0")
    a("s_nop 7")
    a(".p2align 6")
    a("attn_loop:")
    for t in range(4):
        koff = (t + 1) * 1024 if t < 3 else 8192
        a(f"ds_read_b128 {v(Kb[(t+1)&1],4)}, v{kaddr} offset:{koff}")
        a(f"ds_read_b128 {v(Vb[t&1],4)}, v{vaddr} offset:{t*1024}")
        a(f"ds_read_b128 {v(Vb[t&1]+4,4)}, v{vaddr} offset:{t*1024+512}")
        vp = Vb[(t-1)&1]
        softmax_phase(a, Sa, Pa, mfma(Sb, Kb[t&1], Qb, Cb), mfma(Ob, vp, Pb, Ob), mfma(Ob, vp+4, Pb+4, Ob))
        if t == 3:
            a(f"v_add_u32 v{kaddr}, 0x2000, v{kaddr}")
            a(f"v_add_u32 v{vaddr}, v{vinc}, v{vaddr}")
        a("s_waitcnt lgkmcnt(0)")
        vc = Vb[t&1]
        softmax_phase(a, Sb, Pb, mfma(Sa, Kb[(t+1)&1], Qa, Ca), mfma(Oa, vc, Pa, Oa), mfma(Oa, vc+4, Pa+4, Oa))
    a("s_add_u32 s21, s21, 1")
    a("s_lshl_b32 s22, s20, 4")
    a("s_add_u32 s22, s22, s21")
    a("s_cmp_lg_u32 s22, 2")
    a("s_cbranch_scc1 attn_nobar")
    a("s_waitcnt vmcnt(0)")
    a("s_barrier")
    a("attn_nobar:")
    a("s_cmp_lt_u32 s21, 8")
    a("s_cbranch_scc1 attn_loop")
    a(mfma(Ob, Vb[1], Pb, Ob))
    a(mfma(Ob, Vb[1]+4, Pb+4, Ob))
    a("s_nop 15")
    a("s_nop 3")
    a("s_cmp_lg_u32 s20, 0")
    a("s_cbranch_scc1 attn_done")
    a(f"s_mov_b32 s22, {f32(2.0**100)}")
    a(f"v_cmp_nlt_f32 s[24:25], v{Oa+8}, s22")
    a(f"v_cmp_nlt_f32 s[26:27], v{Ob+8}, s22")
    a("s_or_b64 s[24:25], s[24:25], s[26:27]")
    a("s_movk_i32 s23, 0x207")
    for r in list(range(Oa, Oa+8)) + list(range(Ob, Ob+8)):
        a(f"v_cmp_class_f32 s[26:27], v{r}, s23")
        a("s_or_b64 s[24:25], s[24:25], s[26:27]")
    a("s_cmp_eq_u64 s[24:25], 0")
    a("s_cbranch_scc1 attn_done")
    a("s_mov_b32 s20, 1")
    a(f"v_mov_b32 v{kaddr}, v{kaddr0}")
    a(f"v_mov_b32 v{Pa}, 0xff800000")
    a(f"v_mov_b32 v{Pa+1}, 0xff800000")
    a("s_mov_b32 s21, 0")
    a("attn_maxloop:")
    for t in range(4):
        a(f"ds_read_b128 {v(Kb[0],4)}, v{kaddr} offset:{t*1024}")
        a("s_waitcnt lgkmcnt(0)")
        a(mfma(Sa, Kb[0], Qa, None))
        a(mfma(Sb, Kb[0], Qb, None))
        a("s_nop 15")
        for (S, d) in ((Sa, Pa), (Sb, Pa+1)):
            for i in range(0, 16, 2):
                a(f"v_max3_f32 v{d}, v{d}, v{S+i}, v{S+i+1}")
    a(f"v_add_u32 v{kaddr}, 0x2000, v{kaddr}")
    a("s_add_u32 s21, s21, 1")
    a("s_cmp_lt_u32 s21, 8")
    a("s_cbranch_scc1 attn_maxloop")
    setC(Pa, Ca)
    setC(Pa+1, Cb)
    a("s_branch attn_main")
    a("attn_done:")
    a("s_mul_i32 s12, s6, 6144")
    a(f"s_add_u32 s12, s12, {CMB}")
    a(f"v_add_u32 v{tmp}, s12, v2")
    a("s_cmp_eq_u32 s7, 0")
    a("s_cbranch_scc1 attn_comb")
    for T, (O, C) in enumerate(((Oa, Ca), (Ob, Cb))):
        a(f"v_mov_b32 v{O+9}, v{C}")
        a(f"ds_write_b128 v{tmp}, {v(O,4)} offset:{T*3072}")
        a(f"ds_write_b128 v{tmp}, {v(O+4,4)} offset:{T*3072+1024}")
        a(f"ds_write_b128 v{tmp}, {v(O+8,4)} offset:{T*3072+2048}")
    a("s_waitcnt lgkmcnt(0)")
    a("s_barrier")
    a("s_branch attn_end")
    a("attn_comb:")
    a("s_barrier")
    for T, S in enumerate((Sa, Sb)):
        for q in range(3):
            a(f"ds_read_b128 {v(S+4*q,4)}, v{tmp} offset:{T*3072+q*1024}")
    a("s_mul_i32 s12, s9, 144")
    a("s_add_u32 s12, s12, s5")
    a("s_add_u32 s12, s12, 112")
    a("s_lshl_b32 s12, s12, 10")
    a(f"s_add_u32 s12, s12, {HOF}")
    a(f"s_add_u32 s13, s12, {144*1024}")
    a("s_waitcnt lgkmcnt(0)")
    for T, (O, C, S, P) in enumerate(((Oa, Ca, Sa, Pa), (Ob, Cb, Sb, Pb))):
        a(f"v_min_f32 v{tmp}, v{C}, v{S+9}")
        a(f"v_sub_f32 v{C+1}, v{tmp}, v{C}")
        a(f"v_sub_f32 v{C+2}, v{tmp}, v{S+9}")
        a(f"v_exp_f32 v{C+1}, v{C+1}")
        a(f"v_exp_f32 v{C+2}, v{C+2}")
        a("s_nop 0")
        a(f"v_mul_f32 v{tmp}, v{O+8}, v{C+1}")
        a(f"v_fmac_f32 v{tmp}, v{S+8}, v{C+2}")
        a(f"v_rcp_f32 v{tmp}, v{tmp}")
        a("s_nop 0")
        a(f"v_mul_f32 v{tmp}, v{tmp}, v{vg+T}")
        a(f"v_mul_f32 v{C+1}, v{C+1}, v{tmp}")
        a(f"v_mul_f32 v{C+2}, v{C+2}, v{tmp}")
        for i in range(8):
            a(f"v_mul_f32 v{O+i}, v{O+i}, v{C+1}")
            a(f"v_fmac_f32 v{O+i}, v{S+i}, v{C+2}")
        for i in range(4):
            a(f"v_cvt_pk_bf16_f32 v{P+i}, v{O+2*i}, v{O+2*i+1}")
        a(f"buffer_store_dwordx4 {v(P,4)}, v2, s[{SW}:{SW+3}], s{12+T} offen")
    a("attn_end:")
    a("s_endpgm")
    return name, R.hi, (256, 512, CMB + 4*6144)

def gemm_direct(a, SW, voff, sA, sB, ACC, FB, nks, PD, cinit=None):
    def loads(ks):
        fb = FB + 16 * (ks % PD)
        for t in range(2):
            a(f"buffer_load_dwordx4 {v(fb+4*t,4)}, v{voff}, s[{SW}:{SW+3}], s{sA+t} offen offset:{(ks&3)*1024}")
        for t in range(2):
            a(f"buffer_load_dwordx4 {v(fb+8+4*t,4)}, v{voff}, s[{SW}:{SW+3}], s{sB+t} offen offset:{(ks&3)*1024}")
        if ks & 3 == 3:
            for r in (sA, sA+1, sB, sB+1):
                a(f"s_add_u32 s{r}, s{r}, 4096")
    for ks in range(min(PD, nks)):
        loads(ks)
    return loads

def gemm_main(a, loads, ACC, FB, nks, PD, cinit=None):
    for ks in range(nks):
        later = min(PD - 1, nks - 1 - ks)
        a(f"s_waitcnt vmcnt({4*later})")
        fb = FB + 16 * (ks % PD)
        for ta in range(2):
            for tb in range(2):
                d = ACC + 16 * (2*ta + tb)
                c = d if ks > 0 else (None if cinit is None else cinit[ta])
                a(mfma(d, fb + 4*ta, fb + 8 + 4*tb, c))
        if ks + PD < nks:
            loads(ks + PD)

def k_ffn1(a):
    name = "ffn1_kernel"
    kernel_header(a, name)
    prologue(a, 224, "ffn1_end")
    SW, SB1 = 40, 44
    srd(a, SW, P_WS, WS_BYTES)
    srd(a, SB1, P_B1, 1792 * 2)
    PD = 6
    ACC, BIAS, FB = 16, 80, 112
    a("s_mul_i32 s4, s2, 9363")
    a("s_lshr_b32 s4, s4, 16")
    a("s_mul_i32 s5, s4, 7")
    a("s_sub_u32 s5, s2, s5")
    a("s_lshl_b32 s5, s5, 2")
    a("s_add_u32 s5, s5, s3")
    a("v_lshlrev_b32 v2, 4, v0")
    a("v_lshrrev_b32 v3, 5, v0")
    a("v_lshlrev_b32 v3, 3, v3")
    a("s_lshl_b32 s6, s5, 7")
    for ta in range(2):
        for q in range(4):
            a(f"buffer_load_dwordx2 {v(BIAS+16*ta+4*q+2,2)}, v3, s[{SB1}:{SB1+3}], s6 offen offset:{ta*64+q*16}")
    a("v_and_b32 v4, 31, v0")
    a("v_lshlrev_b32 v4, 2, v4")
    a("s_lshl_b32 s6, s4, 8")
    a(f"s_add_u32 s6, s6, {GOFF}")
    a(f"buffer_load_dword v6, v4, s[{SW}:{SW+3}], s6 offen")
    a(f"buffer_load_dword v7, v4, s[{SW}:{SW+3}], s6 offen offset:128")
    a("s_lshl_b32 s8, s5, 16")
    a(f"s_add_u32 s8, s8, {W1F}")
    a("s_add_u32 s9, s8, 32768")
    a("s_lshl_b32 s10, s4, 16")
    a(f"s_add_u32 s10, s10, {XF}")
    a("s_add_u32 s11, s10, 32768")
    loads = gemm_direct(a, SW, 2, 8, 10, ACC, FB, 32, PD)
    a(f"s_waitcnt vmcnt({4*PD})")
    for ta in range(2):
        for q in range(4):
            b = BIAS + 16*ta + 4*q
            a(f"v_lshlrev_b32 v{b}, 16, v{b+2}")
            a(f"v_and_b32 v{b+1}, 0xffff0000, v{b+2}")
            a(f"v_lshlrev_b32 v{b+2}, 16, v{b+3}")
            a(f"v_and_b32 v{b+3}, 0xffff0000, v{b+3}")
    a("v_sub_f32 v6, 1.0, v6")
    a("v_sub_f32 v7, 1.0, v7")
    gemm_main(a, loads, ACC, FB, 32, PD, cinit=[BIAS, BIAS+16])
    a("s_nop 15")
    a(f"s_mul_i32 s8, s4, {2*144*1024}")
    a("s_lshl_b32 s9, s5, 12")
    a("s_add_u32 s8, s8, s9")
    a(f"s_add_u32 s8, s8, {HOF}")
    a(f"s_add_u32 s9, s8, {144*1024}")
    for ta in range(2):
        for tb in range(2):
            d = ACC + 16 * (2*ta + tb)
            for i in range(16):
                a(f"v_max_f32 v{d+i}, 0, v{d+i}")
            for i in range(16):
                a(f"v_mul_f32 v{FB+i}, v{d+i}, v{6+tb}")
            for i in range(16):
                a(f"v_mul_f32 v{d+i}, v{d+i}, v{FB+i}")
            o = FB + 16 + 8 * (2*ta + tb)
            for i in range(8):
                a(f"v_cvt_pk_bf16_f32 v{o+i}, v{d+2*i}, v{d+2*i+1}")
            for m in range(2):
                a(f"buffer_store_dwordx4 {v(o+4*m,4)}, v2, s[{SW}:{SW+3}], s{8+tb} offen offset:{(2*ta+m)*1024}")
    a("ffn1_end:")
    a("s_endpgm")
    return name, FB + 16*PD, (224, 256, 0)

def k_out(a):
    name = "out_kernel"
    kernel_header(a, name)
    prologue(a, 256, "out_end")
    SW, SB2, SO = 40, 44, 48
    srd(a, SW, P_WS, WS_BYTES)
    srd(a, SB2, P_B2, 512 * 2)
    srd(a, SO, P_OUT, 2048 * 512 * 2)
    PD = 6
    ACC, FB = 16, 80
    NKS = 36
    a("s_and_b32 s5, s2, 7")
    a("s_lshr_b32 s4, s2, 3")
    a("v_lshlrev_b32 v2, 4, v0")
    a("s_lshr_b32 s6, s3, 1")
    a("s_and_b32 s7, s3, 1")
    a(f"s_mul_i32 s12, s3, {NKS*1024}")
    a(f"s_mul_i32 s8, s5, {2*144*1024}")
    a("s_add_u32 s8, s8, s12")
    a(f"s_add_u32 s8, s8, {WCF}")
    a(f"s_add_u32 s9, s8, {144*1024}")
    a(f"s_mul_i32 s10, s4, {2*144*1024}")
    a("s_add_u32 s10, s10, s12")
    a(f"s_add_u32 s10, s10, {HOF}")
    a(f"s_add_u32 s11, s10, {144*1024}")
    a("v_lshrrev_b32 v3, 5, v0")
    a("v_lshlrev_b32 v3, 3, v3")
    a("s_lshl_b32 s12, s5, 7")
    a("s_lshl_b32 s13, s6, 6")
    a("s_add_u32 s12, s12, s13")
    for q in range(4):
        a(f"buffer_load_dwordx2 {v(6+2*q,2)}, v3, s[{SB2}:{SB2+3}], s12 offen offset:{q*16}")
    a("v_and_b32 v4, 31, v0")
    a("v_lshlrev_b32 v5, 2, v4")
    a("s_lshl_b32 s13, s4, 1")
    a("s_add_u32 s13, s13, s7")
    a("s_lshl_b32 s14, s13, 7")
    a(f"s_add_u32 s14, s14, {GOFF}")
    a(f"buffer_load_dword v14, v5, s[{SW}:{SW+3}], s14 offen")
    loads = gemm_direct(a, SW, 2, 8, 10, ACC, FB, NKS, PD)
    gemm_main(a, loads, ACC, FB, NKS, PD)
    a("s_nop 15")
    a("s_lshl_b32 s14, s3, 12")
    a("v_add_u32 v5, s14, v2")
    for t in range(4):
        for q in range(4):
            a(f"ds_write_b128 v5, {v(ACC+16*t+4*q,4)} offset:{t*16384+q*1024}")
    a("s_waitcnt lgkmcnt(0)")
    a("s_barrier")
    a("s_lshl_b32 s14, s3, 14")
    a("v_add_u32 v5, s14, v2")
    for src in range(4):
        for q in range(4):
            a(f"ds_read_b128 {v(ACC+16*src+4*q,4)}, v5 offset:{src*4096+q*1024}")
    a("v_sub_f32 v14, 1.0, v14")
    for q in range(4):
        b = FB + 4*q
        a(f"v_lshlrev_b32 v{b}, 16, v{6+2*q}")
        a(f"v_and_b32 v{b+1}, 0xffff0000, v{6+2*q}")
        a(f"v_lshlrev_b32 v{b+2}, 16, v{7+2*q}")
        a(f"v_and_b32 v{b+3}, 0xffff0000, v{7+2*q}")
    a("s_waitcnt lgkmcnt(0)")
    for i in range(16):
        a(f"v_add_f32 v{ACC+i}, v{ACC+i}, v{ACC+16+i}")
        a(f"v_add_f32 v{ACC+32+i}, v{ACC+32+i}, v{ACC+48+i}")
        a(f"v_fmac_f32 v{ACC+i}, v{FB+i}, v14")
        a(f"v_add_f32 v{ACC+i}, v{ACC+i}, v{ACC+32+i}")
    o = FB + 16
    for i in range(8):
        a(f"v_cvt_pk_bf16_f32 v{o+i}, v{ACC+2*i}, v{ACC+2*i+1}")
    a("s_nop 1")
    for p in range(2):
        a(f"v_permlane32_swap_b32 v{o+4*p}, v{o+4*p+2}")
        a(f"v_permlane32_swap_b32 v{o+4*p+1}, v{o+4*p+3}")
    a("v_lshlrev_b32 v4, 10, v4")
    a("v_lshrrev_b32 v3, 5, v0")
    a("v_lshl_add_u32 v4, v3, 4, v4")
    a("s_lshl_b32 s13, s13, 15")
    a("s_add_u32 s13, s13, s12")
    for p in range(2):
        a(f"buffer_store_dwordx4 {v(o+4*p,4)}, v4, s[{SO}:{SO+3}], s13 offen offset:{p*32}")
    a("out_end:")
    a("s_endpgm")
    return name, FB + 16*PD, (256, 256, 65536)

def main(path):
    a = Asm()
    a.raw('.amdgcn_target "amdgcn-amd-amdhsa--gfx950"')
    a.raw(".text")
    ks = [k_conv(a), k_qkv(a), k_attn(a), k_ffn1(a), k_out(a)]
    a.raw('.section .rodata,"a"')
    for (n, nv, _) in ks:
        a.raw(".p2align 6")
        kernel_desc(a, n, nv)
    hdr = []
    for (n, nv, (g, b, lds)) in ks:
        hdr.append(f"; @launch kernel={n} grid=({g},1,1) block=({b},1,1) lds={lds}")
    open(path, "w").write("\n".join(hdr) + "\n" + a.text())

if __name__ == "__main__":
    main(sys.argv[1] if len(sys.argv) > 1 else f"cdna_kernels/{NAME}.s")
```
